```python
import torch

def _softmax(x, axis=-1):
    return torch.softmax(x, dim=axis)
def _gelu(x):
    return torch.nn.functional.gelu(x, approximate="tanh")
def _silu(x):
    return torch.nn.functional.silu(x)
def _sigmoid(x):
    return torch.sigmoid(x)
def _layernorm(x, axis=-1, eps=1e-5):
    m = x.mean(dim=axis, keepdim=True)
    v = x.var(dim=axis, keepdim=True, unbiased=False)
    return (x - m) / torch.sqrt(v + eps)
def _scatter_add(tgt, idx, src, axis=0):
    return tgt.clone().index_add_(axis, idx, src)
def _segment_sum(src, seg, n):
    out = torch.zeros((n,) + src.shape[1:], dtype=src.dtype)
    return out.index_add_(0, seg, src)
def _pad(x, pw):
    flat = tuple(v for pair in reversed(pw) for v in pair)
    return torch.nn.functional.pad(x, flat)

kernel_name = 'recurrent_scan__sliding_block_cached__mixer_token_mlp__decode'

def setup_inputs():

    _w = (lambda a: (lambda t: t.to(torch.bfloat16) if t.is_floating_point() else t)(torch.as_tensor(a)))
    def _A_setup():
        B, Sq, D = 1, 1, 512
        Hq, Hkv, Sk, Dh = 32, 8, 65536, 128
        assert Hq % Hkv == 0, (Hq, Hkv)
        return {
            "x": _w((lambda *s: torch.randn(*s, dtype=torch.bfloat16) * 0.4)(B, Sq, D)),
            "k_cache": _w((lambda *s: torch.randn(*s, dtype=torch.bfloat16) * 1.6)(B, Hkv, Sk, Dh)),
            "v_cache": _w((lambda *s: torch.randn(*s, dtype=torch.bfloat16) * 1.6)(B, Hkv, Sk, Dh)),
            "wq": _w((lambda *s: torch.randn(*s, dtype=torch.bfloat16) * 1.6)(D, Hq * Dh) * (D ** -0.5)),
            "wo": _w((lambda *s: torch.randn(*s, dtype=torch.bfloat16) * 1.6)(Hq * Dh, D) * ((Hq * Dh) ** -0.5)),
        }
    _A_in = _A_setup()

    def _B_setup():
        B, S, D, F = 1, 1, 512, 1792
        return {
            "x": _w((lambda *s: torch.randn(*s, dtype=torch.bfloat16) * 0.4)(B, S, D)),
            "w1": _w((lambda *s: torch.randn(*s, dtype=torch.bfloat16) * 1.6)(S, F) * (S ** -0.5)),
            "b1": _w((lambda *s: torch.randn(*s, dtype=torch.bfloat16) * 1.6)(F) * 0.02),
            "w2": _w((lambda *s: torch.randn(*s, dtype=torch.bfloat16) * 1.6)(F, S) * (F ** -0.5)),
            "b2": _w((lambda *s: torch.randn(*s, dtype=torch.bfloat16) * 1.6)(S) * 0.02),
        }
    _B_in = _B_setup()

    return {
        "A_x": _A_in["x"],
        "A_k_cache": _A_in["k_cache"],
        "A_v_cache": _A_in["v_cache"],
        "A_wq": _A_in["wq"],
        "A_wo": _A_in["wo"],
        "B_x": _B_in["x"],
        "B_w1": _B_in["w1"],
        "B_b1": _B_in["b1"],
        "B_w2": _B_in["w2"],
        "B_b2": _B_in["b2"],
    }

def reference(A_x, A_k_cache, A_v_cache, A_wq, A_wo, B_x, B_w1, B_b1, B_w2, B_b2):
    def _A_ref(x, k_cache, v_cache, wq, wo):
        B, Sq, D = x.shape
        Hq, Dh = 32, 128
        Hkv, Sk = k_cache.shape[1], k_cache.shape[2]
        W = min(4096, max(256, Sk // 4))
        rep = Hq // Hkv
        q = (lambda x, *d: x.permute(*d))((x @ wq).reshape(B, Sq, Hq, Dh), 0, 2, 1, 3)
        k = (lambda x, n, axis: torch.repeat_interleave(x, n, dim=axis))(k_cache[:, :, Sk - W:, :], rep, axis=1)
        v = (lambda x, n, axis: torch.repeat_interleave(x, n, dim=axis))(v_cache[:, :, Sk - W:, :], rep, axis=1)
        scores = torch.einsum("bhqd,bhkd->bhqk", q, k) * (Dh ** -0.5)
        p = _softmax(scores, axis=-1)
        o = torch.einsum("bhqk,bhkd->bhqd", p, v)
        return (lambda x, *d: x.permute(*d))(o, 0, 2, 1, 3).reshape(B, Sq, Hq * Dh) @ wo

    def _B_ref(x, w1, b1, w2, b2):
        B, S, D = x.shape
        h = _layernorm(x, axis=-1)
        u = torch.einsum("bsd,sf->bdf", h, w1) + b1
        u = _gelu(u)
        y = torch.einsum("bdf,fs->bds", u, w2) + b2
        return (lambda x, *d: x.permute(*d))(y, 0, 2, 1)

    x = A_x
    xn = _layernorm(x, axis=-1)
    s = _A_ref(xn, A_k_cache, A_v_cache, A_wq, A_wo)
    g = _silu(_B_ref(xn, B_w1, B_b1, B_w2, B_b2))
    return x + s * g
```

```python
import sys, math, re, subprocess, os

NAME = "recurrent_scan__sliding_block_cached__mixer_token_mlp__decode"

FL, MX, LX, OL, YL, QL = 0, 64, 128, 192, 224, 256
QSTR = 272
XN, HL, PL = 2048, 3072, 4096
WQ, KB, VB, WO, LDS_END = 8192, 24576, 57344, 90112, 106496
F_WQ, F_K, F_V, F_WO, F_Q, F_MX, F_P, F_PUB, F_O, F_Y = [4*i for i in range(10)]
QBOX, OBOX, PBOX, DBG = 0x1000, 0x20000, 0x120000, 0x300000
LOG2E = 1.4426950408889634
GA = 1.5957691216057308 * LOG2E
GB = 1.5957691216057308 * 0.044715 * LOG2E
SCALE = 128 ** -0.5

import struct
def f2u(x): return struct.unpack("<I", struct.pack("<f", x))[0]
def hx(x): return "0x%08x" % (x & 0xffffffff)

class Gen:
    def __init__(s, W=24, stamps=False, maxit=1 << 15, resto=6, opts=None):
        s.L = []; s.W = W; s.stamps = stamps; s.maxit = maxit; s.resto = resto
        s.uid = 0; s.opts = opts or {}
    def __call__(s, t):
        for ln in t.strip("\n").split("\n"):
            ln = ln.strip()
            if not ln: continue
            if ln.endswith(":") : s.L.append(ln)
            else: s.L.append("    " + ln)
    def new(s, p):
        s.uid += 1; return f"L_{p}{s.uid}"
    def stamp(s, idx):
        if s.stamps:
            s(f"s_memrealtime s[{64+2*idx}:{65+2*idx}]")
    def flush_stamps(s, vz):
        if not s.stamps: return
        s("s_waitcnt lgkmcnt(0) vmcnt(0)")
        s("s_lshl_b32 s60, s2, 4")
        s("s_add_u32 s60, s60, s3")
        s("s_lshl_b32 s60, s60, 6")
        s(f"s_add_u32 s60, s60, {hx(DBG)}")
        s("v_mov_b32 v100, s60")
        s("s_mov_b64 exec, 1")
        for i in range(0, 16, 4):
            for j in range(4):
                s(f"v_mov_b32 v{104+j}, s{64+2*(i+j)}")
            s(f"global_store_dwordx4 v100, v[104:107], s[32:33] offset:{4*i}")
            s("s_nop 1")
        s("s_mov_b64 exec, -1")
    def sig_add(s, flag, vz, vone):
        s("s_mov_b64 exec, 1")
        s(f"ds_add_u32 {vz}, {vone} offset:{FL+flag}")
        s("s_mov_b64 exec, -1")
    def wait_flag(s, flag, n, vz, vt, st="s58", sleep=0):
        l = s.new("wf")
        s(f"{l}:")
        if sleep: s(f"s_sleep {sleep}")
        s(f"ds_read_b32 {vt}, {vz} offset:{FL+flag}")
        s("s_waitcnt lgkmcnt(0)")
        s(f"v_readfirstlane_b32 {st}, {vt}")
        s(f"s_cmp_ge_u32 {st}, {n}")
        s(f"s_cbranch_scc0 {l}")
    def allreduce(s, op, regs, tmps):
        for ctl in ["quad_perm:[1,0,3,2]", "quad_perm:[2,3,0,1]", "row_half_mirror", "row_mirror"]:
            if len(regs) < 3: s("s_nop 1")
            for r in regs:
                s(f"{op}_dpp {r}, {r}, {r} {ctl} row_mask:0xf bank_mask:0xf")
        s.xrow(op, regs, tmps)
    def xrow(s, op, regs, tmps, first16=True):
        for sw in ["v_permlane16_swap_b32", "v_permlane32_swap_b32"]:
            for r, t in zip(regs, tmps): s(f"v_mov_b32 {t}, {r}")
            s("s_nop 1")
            for r, t in zip(regs, tmps): s(f"{sw} {r}, {t}")
            if len(regs) < 2: s("s_nop 0")
            for r, t in zip(regs, tmps): s(f"{op} {r}, {r}, {t}")
    def rbf(s, dst, src):
        s(f"v_cvt_pk_bf16_f32 {dst}, {src}, {src}")
        s(f"v_and_b32 {dst}, 0xffff0000, {dst}")

    def build(s):
        W = s.W
        s.head()
        s.prologue()
        s.loader_a()
        s.pre()
        s.loader_b()
        s.ln()
        s.attention()
        s.aux()
        s.tail()
        s.foot()
        return "\n".join(s.L) + "\n"

    def head(s):
        src = open(os.path.join(os.path.dirname(os.path.abspath(__file__)), "header.txt")).read().rstrip("\n")
        s.L.append(src)
        s.L.append(f"; @launch grid=(256,1,1) block=(576,1,1) lds={LDS_END}")
        s.L.append('.amdgcn_target "amdgcn-amd-amdhsa--gfx950"')
        s.L.append(".text")
        s.L.append(f".globl {NAME}_kernel")
        s.L.append(".p2align 8")
        s.L.append(f".type {NAME}_kernel,@function")
        s.L.append(f"{NAME}_kernel:")

    def foot(s):
        s("L_exit:")
        s("s_endpgm")
        s.L.append('.section .rodata,"a"')
        s.L.append(".p2align 6")
        s.L.append(f".amdhsa_kernel {NAME}_kernel")
        s.L.append("  .amdhsa_next_free_vgpr 128")
        s.L.append("  .amdhsa_next_free_sgpr 102")
        s.L.append("  .amdhsa_accum_offset 128")
        s.L.append("  .amdhsa_group_segment_fixed_size 0")
        s.L.append("  .amdhsa_kernarg_size 104")
        s.L.append("  .amdhsa_user_sgpr_count 2")
        s.L.append("  .amdhsa_user_sgpr_kernarg_segment_ptr 1")
        s.L.append("  .amdhsa_system_sgpr_workgroup_id_x 1")
        s.L.append(".end_amdhsa_kernel")

    def prologue(s):
        s(f"""
        s_cmp_ge_u32 s2, 256
        s_cbranch_scc1 L_exit
        s_load_dwordx16 s[8:23], s[0:1], 0
        s_load_dwordx8 s[24:31], s[0:1], 64
        s_load_dwordx2 s[32:33], s[0:1], 96
        """)
        s.stamp(0)
        s(f"""
        v_lshrrev_b32 v1, 6, v0
        v_and_b32 v0, 63, v0
        v_mov_b32 v2, 0
        v_readfirstlane_b32 s3, v1
        v_lshlrev_b32 v3, 2, v0
        s_and_b32 s4, s2, 7
        s_lshr_b32 s5, s2, 3
        s_cmp_eq_u32 s3, 8
        s_cbranch_scc1 L_loader
        ds_write_b32 v3, v2
        s_waitcnt lgkmcnt(0)
        s_barrier
        s_branch L_pre
        """)

    def loader_a(s):
        W = s.W
        nt = s.opts.get("nt", " nt")
        s(f"""
        L_loader:
        s_setprio 3
        v_lshrrev_b32 v1, 3, v0
        v_lshrrev_b32 v4, 4, v0
        v_and_b32 v5, 7, v0
        v_lshlrev_b32 v6, 1, v4
        v_xor_b32 v5, v5, v6
        v_lshlrev_b32 v5, 4, v5
        v_lshl_add_u32 v5, v1, 13, v5
        s_lshr_b32 s34, s5, 3
        s_and_b32 s35, s5, 7
        s_lshl_b32 s34, s34, 20
        s_lshl_b32 s35, s35, 7
        s_add_u32 s34, s34, s35
        s_lshl_b32 s35, s4, 10
        s_add_u32 s34, s34, s35
        v_add_u32 v5, s34, v5
        s_barrier
        s_waitcnt lgkmcnt(0)
        s_mov_b32 s36, s14
        s_mov_b32 s37, s15
        s_mov_b32 s38, 0x400000
        s_mov_b32 s39, 0x20000
        s_mov_b32 s52, 0
        s_movk_i32 s53, 0x400
        s_mov_b32 m0, {WQ}
        s_mov_b32 s54, 0x10000
        """)
        s.stamp(1)
        s(f"""
        L_ldq:
        buffer_load_dwordx4 v5, s[36:39], s52 offen{nt} lds
        s_add_u32 m0, m0, s53
        s_add_u32 s52, s52, s54
        s_cmp_lt_u32 s52, 0x100000
        s_cbranch_scc1 L_ldq
        """)
        s.stamp(2)
        s(f"""
        s_mov_b32 s40, s10
        s_mov_b32 s41, s11
        s_mov_b32 s42, 0x8000000
        s_mov_b32 s43, 0x20000
        s_lshl_b32 s34, s4, 24
        s_lshl_b32 s35, s5, 15
        s_add_u32 s34, s34, s35
        s_add_u32 s34, s34, 0xf00000
        v_and_b32 v6, 15, v0
        v_xor_b32 v7, v6, v4
        v_lshlrev_b32 v7, 4, v7
        v_lshl_add_u32 v7, v4, 8, v7
        v_add_u32 v8, s34, v7
        v_xor_b32 v9, 64, v8
        v_xor_b32 v10, 0x80, v8
        v_xor_b32 v11, 0xc0, v8
        s_mov_b32 s55, s5
        s_add_u32 s56, s5, 8
        s_add_u32 s57, s5, {(W-4)//4}
        L_ldk:
        s_and_b32 s52, s55, 7
        s_lshl_b32 s52, s52, 12
        s_add_u32 m0, s52, {KB}
        s_waitcnt vmcnt({W-4})
        s_cmp_eq_u32 s55, s57
        s_cbranch_scc0 L_ldk1
        s_mov_b64 exec, 1
        v_mov_b32 v20, 1
        ds_write_b32 v2, v20 offset:{FL+F_WQ}
        s_mov_b64 exec, -1
        """)
        s.stamp(3)
        s(f"""
        L_ldk1:
        buffer_load_dwordx4 v8, s[40:43], s52 offen{nt} lds
        buffer_load_dwordx4 v9, s[40:43], s52 offen offset:1024{nt} lds
        buffer_load_dwordx4 v10, s[40:43], s52 offen offset:2048{nt} lds
        buffer_load_dwordx4 v11, s[40:43], s52 offen offset:3072{nt} lds
        s_add_u32 s55, s55, 1
        s_cmp_lt_u32 s55, s56
        s_cbranch_scc1 L_ldk
        s_branch L_loader_b
        """)

    def loader_b(s):
        W = s.W
        nt = s.opts.get("nt", " nt")
        s(f"""
        L_loader_b:
        s_mov_b32 s44, s12
        s_mov_b32 s45, s13
        s_mov_b32 s46, 0x8000000
        s_mov_b32 s47, 0x20000
        v_lshlrev_b32 v7, 1, v4
        v_xor_b32 v7, v6, v7
        v_lshlrev_b32 v7, 4, v7
        v_lshl_add_u32 v7, v4, 8, v7
        v_add_u32 v8, s34, v7
        v_xor_b32 v9, 0x80, v8
        s_mov_b32 s55, s5
        L_ldv:
        s_and_b32 s52, s55, 7
        s_lshl_b32 s52, s52, 12
        s_add_u32 m0, s52, {VB}
        s_waitcnt vmcnt({W-4})
        s_cmp_eq_u32 s55, s57
        s_cbranch_scc0 L_ldv1
        s_mov_b64 exec, 1
        ds_write_b32 v2, v20 offset:{FL+F_K}
        s_mov_b64 exec, -1
        """)
        s.stamp(4)
        s(f"""
        L_ldv1:
        buffer_load_dwordx4 v8, s[44:47], s52 offen{nt} lds
        buffer_load_dwordx4 v9, s[44:47], s52 offen offset:1024{nt} lds
        buffer_load_dwordx4 v8, s[44:47], s52 offen offset:2048{nt} lds
        buffer_load_dwordx4 v9, s[44:47], s52 offen offset:3072{nt} lds
        s_add_u32 s55, s55, 1
        s_cmp_lt_u32 s55, s56
        s_cbranch_scc1 L_ldv
        s_mov_b32 s48, s16
        s_mov_b32 s49, s17
        s_mov_b32 s50, 0x400000
        s_mov_b32 s51, 0x20000
        s_lshl_b32 s34, s4, 19
        s_lshl_b32 s35, s5, 14
        s_add_u32 s34, s34, s35
        v_lshlrev_b32 v7, 4, v0
        v_add_u32 v8, s34, v7
        v_xor_b32 v9, 32, v8
        v_xor_b32 v10, 64, v8
        v_xor_b32 v11, 0x60, v8
        s_mov_b32 s55, s5
        s_add_u32 s56, s5, 4
        L_ldo:
        s_and_b32 s52, s55, 3
        s_and_b32 s35, s55, 1
        s_lshl_b32 s52, s52, 12
        s_lshl_b32 s35, s35, 7
        s_add_u32 m0, s52, {WO}
        v_xor_b32 v12, s35, v8
        v_xor_b32 v13, s35, v9
        v_xor_b32 v14, s35, v10
        v_xor_b32 v15, s35, v11
        s_waitcnt vmcnt({W-4})
        buffer_load_dwordx4 v12, s[48:51], s52 offen{nt} lds
        buffer_load_dwordx4 v13, s[48:51], s52 offen offset:1024{nt} lds
        buffer_load_dwordx4 v14, s[48:51], s52 offen offset:2048{nt} lds
        buffer_load_dwordx4 v15, s[48:51], s52 offen offset:3072{nt} lds
        s_add_u32 s55, s55, 1
        s_cmp_lt_u32 s55, s56
        s_cbranch_scc1 L_ldo
        """)
        s.stamp(5)
        s(f"""
        s_waitcnt vmcnt(16)
        s_mov_b64 exec, 1
        ds_write_b32 v2, v20 offset:{FL+F_V}
        """)
        s.stamp(6)
        s(f"""
        s_waitcnt vmcnt(0)
        ds_write_b32 v2, v20 offset:{FL+F_WO}
        s_mov_b64 exec, -1
        """)
        s.stamp(7)
        s.flush_stamps("v2")
        s("s_endpgm")

    def pre(s):
        s(f"""
        L_pre:
        v_lshlrev_b32 v3, 4, v0
        s_mov_b64 exec, 1
        global_load_dword v24, v2, s[32:33] sc1
        s_mov_b64 exec, -1
        global_load_dwordx4 v[20:23], v3, s[8:9]
        s_cmp_ge_u32 s3, 4
        s_cbranch_scc1 L_pre_aux
        s_lshl_b32 s34, s4, 13
        s_lshr_b32 s35, s5, 3
        s_lshl_b32 s35, s35, 11
        s_add_u32 s34, s34, s35
        s_and_b32 s35, s5, 7
        s_lshl_b32 s35, s35, 8
        s_add_u32 s34, s34, s35
        s_lshl_b32 s35, s3, 6
        s_add_u32 s34, s34, s35
        s_add_u32 s34, s34, {hx(QBOX)}
        v_mov_b32 v25, s34
        s_mov_b64 exec, 1
        global_load_dword v127, v25, s[32:33] sc1
        s_mov_b64 exec, -1
        s_mov_b32 s36, 1
        s_branch L_touch
        L_pre_aux:
        s_sub_u32 s35, s3, 4
        s_lshl_b32 s35, s35, 10
        v_add_u32 v4, s35, v3
        v_mov_b32 v28, 0
        v_mov_b32 v29, 0
        v_mov_b32 v30, 0
        v_mov_b32 v31, 0
        v_mov_b32 v32, 0
        v_mov_b32 v33, 0
        v_mov_b32 v34, 0
        v_mov_b32 v35, 0
        v_mov_b32 v36, 0
        v_mov_b32 v37, 0
        v_mov_b32 v38, 0
        v_mov_b32 v39, 0
        v_cmp_gt_u32 vcc, 0xe00, v4
        s_and_saveexec_b64 s[34:35], vcc
        global_load_dwordx4 v[28:31], v4, s[20:21]
        global_load_dwordx4 v[32:35], v4, s[22:23]
        global_load_dwordx4 v[36:39], v4, s[24:25]
        s_mov_b64 exec, -1
        s_mov_b32 s36, 2
        L_touch:
        """)
        s.stamp(10)
        s("s_mov_b64 exec, 0")
        for w in range(8):
            s(f"s_cmp_eq_u32 s3, {w}")
            s(f"s_cbranch_scc1 L_pad{w+1}")
        s("L_touch_ret:")
        s("s_mov_b64 exec, -1")
        s.stamp(11)
        s("s_branch L_ln")

    def ln(s):
        s(f"""
        L_ln:
        s_mov_b32 s37, {XN}
        s_cmp_ge_u32 s3, 4
        s_cbranch_scc1 L_ln_w3
        s_waitcnt vmcnt(1)
        s_branch L_ln_loop
        L_ln_w3:
        s_waitcnt vmcnt(3)
        L_ln_loop:
        """)
        s.stamp(12)
        for k in range(4):
            s(f"v_lshlrev_b32 v{8+2*k}, 16, v{20+k}")
            s(f"v_and_b32 v{9+2*k}, 0xffff0000, v{20+k}")
        s("""
        v_add_f32 v4, v8, v9
        v_add_f32 v5, v10, v11
        v_add_f32 v6, v12, v13
        v_add_f32 v7, v14, v15
        v_add_f32 v4, v4, v5
        v_add_f32 v6, v6, v7
        v_add_f32 v4, v4, v6
        """)
        s.allreduce("v_add_f32", ["v4"], ["v5"])
        s("v_mul_f32 v4, 0x3b000000, v4")
        for k in range(8):
            s(f"v_sub_f32 v{40+k}, v{8+k}, v4")
        s("v_mul_f32 v5, v40, v40")
        for k in range(1, 8):
            s(f"v_fmac_f32 v5, v{40+k}, v{40+k}")
        s.allreduce("v_add_f32", ["v5"], ["v6"])
        s("v_mul_f32 v5, 0x3b000000, v5")
        s.rbf("v4", "v4")
        s.rbf("v5", "v5")
        s(f"v_add_f32 v5, {hx(f2u(1e-5))}, v5")
        s.rbf("v5", "v5")
        s("v_sqrt_f32 v5, v5")
        s("s_nop 0")
        s.rbf("v5", "v5")
        s("v_rcp_f32 v5, v5")
        for k in range(8):
            s(f"v_sub_f32 v{40+k}, v{8+k}, v4")
        for k in range(4):
            s(f"v_cvt_pk_bf16_f32 v{8+k}, v{40+2*k}, v{41+2*k}")
        for k in range(4):
            s(f"v_lshlrev_b32 v{40+2*k}, 16, v{8+k}")
            s(f"v_and_b32 v{41+2*k}, 0xffff0000, v{8+k}")
        for k in range(8):
            s(f"v_mul_f32 v{40+k}, v{40+k}, v5")
        for k in range(4):
            s(f"v_cvt_pk_bf16_f32 v{20+k}, v{40+2*k}, v{41+2*k}")
        s(f"""
        v_lshl_add_u32 v6, v0, 4, s37
        ds_write_b128 v6, v[20:23]
        s_add_u32 s37, s37, 1024
        s_sub_u32 s36, s36, 1
        s_cmp_lg_u32 s36, 0
        s_cbranch_scc1 L_ln_loop
        v_readfirstlane_b32 s38, v24
        s_add_u32 s38, s38, 1
        s_mul_i32 s39, s38, 0x9e3779b1
        s_and_b32 s40, s39, 0xff
        s_mul_i32 s41, s40, 0x01010101
        s_cmp_ge_u32 s3, 4
        s_cbranch_scc1 L_aux
        """)

    def attention(s):
        s("L_att:")
        s("s_setprio 2")
        s.stamp(1)
        s(f"""
        v_lshrrev_b32 v1, 4, v0
        v_and_b32 v3, 15, v0
        v_mov_b32 v4, 1
        s_lshr_b32 s34, s5, 3
        s_and_b32 s35, s5, 7
        v_lshlrev_b32 v5, 3, v1
        s_lshl_b32 s36, s34, 8
        s_add_u32 s36, s36, {XN}
        v_add_u32 v5, s36, v5
        s_waitcnt lgkmcnt(0)
        """)
        for k in range(4):
            s(f"ds_read2_b64 v[{8+4*k}:{11+4*k}], v5 offset0:{8*k} offset1:{8*k+4}")
        s(f"""
        v_lshrrev_b32 v6, 2, v3
        v_and_b32 v7, 3, v3
        v_lshl_add_u32 v24, v1, 2, v6
        v_lshrrev_b32 v25, 1, v24
        v_and_b32 v25, 3, v25
        v_lshlrev_b32 v25, 1, v25
        s_lshl_b32 s36, s3, 1
        v_lshrrev_b32 v26, 1, v7
        v_add_u32 v26, s36, v26
        v_xor_b32 v26, v26, v25
        v_lshlrev_b32 v26, 4, v26
        v_lshl_add_u32 v26, v24, 7, v26
        v_and_b32 v27, 1, v7
        v_lshl_add_u32 v26, v27, 3, v26
        v_add_u32 v26, {WQ}, v26
        """)
        s(f"""
        s_lshl_b32 s36, s4, 13
        s_add_u32 s36, s36, {hx(QBOX)}
        s_lshl_b32 s37, s34, 11
        s_lshl_b32 s42, s35, 8
        s_add_u32 s37, s37, s42
        s_lshl_b32 s42, s3, 6
        s_add_u32 s37, s37, s42
        s_add_u32 s37, s37, s36
        v_lshl_add_u32 v28, v1, 4, s37
        v_lshrrev_b32 v29, 5, v0
        v_and_b32 v30, 31, v0
        v_lshlrev_b32 v29, 11, v29
        v_lshl_add_u32 v29, v30, 4, v29
        s_lshl_b32 s42, s3, 9
        s_add_u32 s42, s42, s36
        v_add_u32 v29, s42, v29
        v_add_u32 v27, 0x1000, v29
        s_mov_b32 s43, 0xffffff00
        v_mov_b32 v31, s40
        s_mov_b32 s44, 0x0c0c0400
        s_mov_b32 s45, 0x04000c0c
        """)
        s.wait_flag(F_WQ, 1, "v2", "v32")
        s.stamp(2)
        for k in range(4):
            s(f"ds_read_b64_tr_b16 v[{36+4*k}:{37+4*k}], v26 offset:{4096*k}")
            s(f"ds_read_b64_tr_b16 v[{38+4*k}:{39+4*k}], v26 offset:{4096*k+2048}")
        for k in range(4):
            s(f"s_waitcnt lgkmcnt({6-2*k})")
            c = "0" if k == 0 else "v[32:35]"
            s(f"v_mfma_f32_16x16x32_bf16 v[32:35], v[{36+4*k}:{39+4*k}], v[{8+4*k}:{11+4*k}], {c}")
        s("s_mov_b32 exec_lo, 0x00010001")
        s("s_mov_b32 exec_hi, 0x00010001")
        s("s_nop 7")
        for r in range(4):
            s(f"v_and_or_b32 v{32+r}, v{32+r}, s43, v31")
        s("global_store_dwordx4 v28, v[32:35], s[32:33]")
        s("s_mov_b64 exec, -1")
        s.stamp(3)
        lp = s.new("qpoll"); ok = s.new("qok"); nors = s.new("qnors")
        s(f"""
        s_mov_b32 s46, 0
        {lp}:
        global_load_dwordx4 v[36:39], v29, s[32:33] sc1
        s_cmp_eq_u32 s46, {s.resto}
        s_cbranch_scc0 {nors}
        s_mov_b32 exec_lo, 0x00010001
        s_mov_b32 exec_hi, 0x00010001
        global_store_dwordx4 v28, v[32:35], s[32:33] sc1
        s_mov_b64 exec, -1
        {nors}:
        global_load_dwordx4 v[40:43], v27, s[32:33] sc1
        s_add_u32 s46, s46, 1
        s_waitcnt vmcnt(0)
        v_perm_b32 v44, v37, v36, s44
        v_perm_b32 v45, v39, v38, s45
        v_perm_b32 v46, v41, v40, s44
        v_perm_b32 v47, v43, v42, s45
        v_or_b32 v44, v44, v45
        v_or_b32 v46, v46, v47
        v_cmp_eq_u32 vcc, s41, v44
        v_cmp_eq_u32 s[48:49], s41, v46
        s_and_b64 vcc, vcc, s[48:49]
        s_cmp_eq_u64 vcc, -1
        s_cbranch_scc1 {ok}
        s_cmp_lt_u32 s46, {s.maxit}
        s_cbranch_scc1 {lp}
        {ok}:
        """)
        s.stamp(4)
        rs = s.new("qrs")
        s(f"""
        s_cmp_gt_u32 s46, {s.resto}
        s_cbranch_scc1 {rs}
        s_mov_b32 exec_lo, 0x00010001
        s_mov_b32 exec_hi, 0x00010001
        global_store_dwordx4 v28, v[32:35], s[32:33] sc1
        s_mov_b64 exec, -1
        {rs}:
        """)
        for r in range(8):
            s(f"v_and_b32 v{36+r}, s43, v{36+r}")
        for r in range(4):
            s(f"v_add_f32 v{36+r}, v{36+r}, v{40+r}")
        for r in range(4): s(f"v_mov_b32 v{40+r}, v{36+r}")
        s("s_nop 1")
        for r in range(4): s(f"v_permlane32_swap_b32 v{36+r}, v{40+r}")
        for r in range(4): s(f"v_add_f32 v{36+r}, v{36+r}, v{40+r}")
        s(f"""
        v_cvt_pk_bf16_f32 v36, v36, v37
        v_cvt_pk_bf16_f32 v37, v38, v39
        s_mul_i32 s42, s3, {QSTR}
        v_lshl_add_u32 v40, v30, 3, s42
        ds_write_b64 v40, v[36:37] offset:{QL}
        """)
        s.sig_add(F_Q, "v2", "v4")
        s(f"""
        v_and_b32 v5, 3, v3
        v_mul_u32_u24 v5, {QSTR}, v5
        v_lshl_add_u32 v5, v1, 4, v5
        v_xor_b32 v6, v1, v3
        v_lshlrev_b32 v6, 4, v6
        v_lshl_add_u32 v6, v3, 8, v6
        s_lshl_b32 s42, s3, 13
        s_add_u32 s42, s42, {KB}
        v_add_u32 v6, s42, v6
        v_xor_b32 v7, 64, v6
        v_xor_b32 v24, 0x80, v6
        v_xor_b32 v25, 0xc0, v6
        """)
        s.wait_flag(F_Q, 4, "v2", "v40")
        for k in range(4):
            s(f"ds_read_b128 v[{8+4*k}:{11+4*k}], v5 offset:{QL+64*k}")
        s.wait_flag(F_K, 1, "v2", "v40")
        s.stamp(5)
        ka = ["v6", "v7", "v24", "v25"]
        for t in range(2):
            for k in range(4):
                s(f"ds_read_b128 v[{64+16*t+4*k}:{67+16*t+4*k}], {ka[k]} offset:{4096*t}")
        for t in range(2):
            for k in range(4):
                s(f"s_waitcnt lgkmcnt({7-(4*t+k)})")
                d = f"v[{40+4*t}:{43+4*t}]"
                c = "0" if k == 0 else d
                s(f"v_mfma_f32_16x16x32_bf16 {d}, v[{64+16*t+4*k}:{67+16*t+4*k}], v[{8+4*k}:{11+4*k}], {c}")
        s("s_nop 7")
        for p in range(4):
            s(f"v_cvt_pk_bf16_f32 v{48+p}, v{40+2*p}, v{41+2*p}")
        for p in range(4):
            s(f"v_lshlrev_b32 v{40+2*p}, 16, v{48+p}")
            s(f"v_and_b32 v{41+2*p}, 0xffff0000, v{48+p}")
        for r in range(8):
            s(f"v_mul_f32 v{40+r}, {hx(f2u(SCALE))}, v{40+r}")
        for p in range(4):
            s(f"v_cvt_pk_bf16_f32 v{48+p}, v{40+2*p}, v{41+2*p}")
        for p in range(4):
            s(f"v_lshlrev_b32 v{40+2*p}, 16, v{48+p}")
            s(f"v_and_b32 v{41+2*p}, 0xffff0000, v{48+p}")
        s("""
        v_max3_f32 v52, v40, v41, v42
        v_max3_f32 v53, v43, v44, v45
        v_max3_f32 v52, v52, v46, v47
        v_max_f32 v52, v52, v53
        """)
        s.xrow("v_max_f32", ["v52"], ["v53"])
        s(f"""
        s_lshl_b32 s42, s3, 2
        v_and_b32 v54, 3, v3
        v_lshlrev_b32 v54, 4, v54
        v_add_u32 v55, s42, v54
        s_mov_b64 exec, 15
        ds_write_b32 v55, v52 offset:{MX}
        s_mov_b64 exec, -1
        """)
        s.sig_add(F_MX, "v2", "v4")
        s.wait_flag(F_MX, 4, "v2", "v53")
        s(f"""
        ds_read_b128 v[56:59], v54 offset:{MX}
        s_waitcnt lgkmcnt(0)
        v_max3_f32 v52, v56, v57, v58
        v_max_f32 v52, v52, v59
        v_mul_f32 v53, {hx(f2u(LOG2E))}, v52
        s_mov_b32 s42, {hx(f2u(LOG2E))}
        """)
        for r in range(8):
            s(f"v_fma_f32 v{40+r}, v{40+r}, s42, -v53")
        for r in range(8):
            s(f"v_exp_f32 v{40+r}, v{40+r}")
        s("s_nop 0")
        for p in range(4):
            s(f"v_cvt_pk_bf16_f32 v{48+p}, v{40+2*p}, v{41+2*p}")
        s(f"""
        s_lshl_b32 s42, s3, 10
        v_lshl_add_u32 v60, v0, 4, s42
        ds_write_b128 v60, v[48:51] offset:{PL}
        v_add_f32 v40, v40, v41
        v_add_f32 v42, v42, v43
        v_add_f32 v44, v44, v45
        v_add_f32 v46, v46, v47
        v_add_f32 v40, v40, v42
        v_add_f32 v44, v44, v46
        v_add_f32 v53, v40, v44
        """)
        s.xrow("v_add_f32", ["v53"], ["v41"])
        s(f"""
        s_mov_b64 exec, 15
        ds_write_b32 v55, v53 offset:{LX}
        s_mov_b64 exec, -1
        """)
        s.sig_add(F_P, "v2", "v4")
        s(f"""
        v_lshrrev_b32 v5, 2, v3
        v_and_b32 v6, 3, v3
        v_lshl_add_u32 v7, v1, 2, v5
        v_and_b32 v24, 7, v7
        v_lshlrev_b32 v24, 1, v24
        s_lshl_b32 s42, s3, 2
        v_xor_b32 v24, s42, v24
        v_lshrrev_b32 v25, 1, v6
        v_or_b32 v24, v24, v25
        v_lshlrev_b32 v24, 4, v24
        v_lshl_add_u32 v24, v7, 8, v24
        v_and_b32 v25, 1, v6
        v_lshl_add_u32 v24, v25, 3, v24
        v_add_u32 v24, {VB}, v24
        v_xor_b32 v25, 32, v24
        """)
        s(f"""
        s_lshl_b32 s42, s4, 17
        s_lshl_b32 s46, s5, 7
        s_add_u32 s42, s42, s46
        s_lshl_b32 s46, s3, 13
        s_add_u32 s42, s42, s46
        s_add_u32 s42, s42, {hx(OBOX)}
        v_and_b32 v26, 3, v3
        v_lshlrev_b32 v26, 15, v26
        v_lshl_add_u32 v26, v1, 4, v26
        v_and_b32 v27, 4, v3
        v_lshl_add_u32 v26, v27, 4, v26
        v_add_u32 v26, s42, v26
        v_add_u32 v27, 0x1000, v26
        v_cmp_lt_u32 s[50:51], 3, v3
        """)
        s.wait_flag(F_P, 4, "v2", "v40")
        s("v_lshlrev_b32 v61, 4, v0")
        for k in range(4):
            s(f"ds_read_b128 v[{8+4*k}:{11+4*k}], v61 offset:{PL+1024*k}")
        s(f"""
        ds_read_b128 v[56:59], v54 offset:{LX}
        s_waitcnt lgkmcnt(0)
        v_add_f32 v56, v56, v57
        v_add_f32 v58, v58, v59
        v_add_f32 v53, v56, v58
        v_and_or_b32 v52, v52, s43, v31
        v_and_or_b32 v53, v53, s43, v31
        """)
        s.wait_flag(F_V, 1, "v2", "v40")
        s.stamp(6)
        va = ["v24", "v25"]
        for b in range(2):
            for k in range(4):
                s(f"ds_read_b64_tr_b16 v[{64+16*b+4*k}:{65+16*b+4*k}], {va[b]} offset:{8192*k}")
                s(f"ds_read_b64_tr_b16 v[{66+16*b+4*k}:{67+16*b+4*k}], {va[b]} offset:{8192*k+4096}")
        for b in range(2):
            for k in range(4):
                n = 14 - 2*(4*b+k)
                s(f"s_waitcnt lgkmcnt({min(n,15)})")
                d = f"v[{40+4*b}:{43+4*b}]"
                c = "0" if k == 0 else d
                s(f"v_mfma_f32_16x16x32_bf16 {d}, v[{64+16*b+4*k}:{67+16*b+4*k}], v[{8+4*k}:{11+4*k}], {c}")
        s("s_nop 7")
        for r in range(8):
            s(f"v_and_or_b32 v{40+r}, v{40+r}, s43, v31")
        for b in range(2):
            for r in range(4):
                src = "v52" if r % 2 == 0 else "v53"
                s(f"v_cndmask_b32 v{40+4*b+r}, v{40+4*b+r}, {src}, s[50:51]")
        s(f"""
        s_mov_b32 exec_lo, 0x00ff00ff
        s_mov_b32 exec_hi, 0x00ff00ff
        global_store_dwordx4 v26, v[40:43], s[32:33]
        global_store_dwordx4 v27, v[44:47], s[32:33]
        s_mov_b64 exec, -1
        """)
        s.sig_add(F_PUB, "v2", "v4")
        s.stamp(7)
        s(f"""
        v_lshrrev_b32 v5, 2, v3
        v_and_b32 v6, 3, v3
        v_lshl_add_u32 v7, v1, 2, v5
        v_and_b32 v24, 7, v7
        v_lshlrev_b32 v24, 1, v24
        s_lshl_b32 s42, s3, 4
        v_xor_b32 v24, s42, v24
        v_lshrrev_b32 v25, 1, v6
        v_or_b32 v24, v24, v25
        v_lshlrev_b32 v24, 4, v24
        v_lshl_add_u32 v24, v7, 10, v24
        v_and_b32 v25, 1, v6
        v_lshl_add_u32 v24, v25, 3, v24
        v_add_u32 v24, {WO}, v24
        v_lshlrev_b32 v62, 3, v1
        """)
        s(f"""
        s_lshl_b32 s42, s2, 12
        s_lshl_b32 s46, s3, 10
        s_add_u32 s42, s42, s46
        s_add_u32 s42, s42, {hx(PBOX)}
        v_lshrrev_b32 v28, 2, v3
        v_lshlrev_b32 v28, 7, v28
        v_and_b32 v29, 2, v3
        v_lshl_add_u32 v28, v29, 8, v28
        v_lshl_add_u32 v28, v1, 5, v28
        v_and_b32 v29, 1, v3
        v_lshl_add_u32 v28, v29, 4, v28
        v_add_u32 v28, s42, v28
        v_lshrrev_b32 v29, 2, v3
        v_cmp_eq_u32 s[60:61], 0, v29
        v_cmp_eq_u32 s[62:63], 1, v29
        v_cmp_eq_u32 s[96:97], 2, v29
        v_cmp_eq_u32 s[98:99], 3, v29
        v_and_b32 v29, 1, v3
        v_cmp_eq_u32 s[52:53], 1, v29
        v_and_b32 v29, 2, v3
        v_cmp_eq_u32 s[54:55], 2, v29
        """)
        lp = s.new("ow"); nors = s.new("owN"); done = s.new("owD")
        s(f"""
        s_mov_b32 s46, 0
        {lp}:
        ds_read_b32 v30, v2 offset:{FL+F_O}
        s_add_u32 s46, s46, 1
        s_cmp_eq_u32 s46, {s.opts.get('resto2', 40)}
        s_cbranch_scc0 {nors}
        s_mov_b32 exec_lo, 0x00ff00ff
        s_mov_b32 exec_hi, 0x00ff00ff
        global_store_dwordx4 v26, v[40:43], s[32:33] sc1
        global_store_dwordx4 v27, v[44:47], s[32:33] sc1
        s_mov_b64 exec, -1
        {nors}:
        s_waitcnt lgkmcnt(0)
        v_readfirstlane_b32 s58, v30
        s_cmp_ge_u32 s58, 1
        s_cbranch_scc0 {lp}
        ds_read_b64 v[8:9], v62 offset:{OL}
        """)
        s.wait_flag(F_WO, 1, "v2", "v30")
        s.stamp(8)
        for nb in range(8):
            if nb == 0:
                s(f"ds_read_b64_tr_b16 v[64:65], v24")
            else:
                s(f"v_xor_b32 v25, {32*nb}, v24")
                s(f"ds_read_b64_tr_b16 v[{64+2*nb}:{65+2*nb}], v25")
        masks = ["s[60:61]", "s[62:63]", "s[96:97]", "s[98:99]"]
        for t in range(4):
            s(f"v_cndmask_b32 v{10+2*t}, v2, v8, {masks[t]}")
            s(f"v_cndmask_b32 v{11+2*t}, v2, v9, {masks[t]}")
        s("s_nop 0")
        for x in range(2):
            for t in range(4):
                nb = 4*x + t
                s(f"s_waitcnt lgkmcnt({7-nb})")
                d = f"v[{48+4*x}:{51+4*x}]"
                c = "0" if t == 0 else d
                s(f"v_mfma_f32_16x16x16_bf16 {d}, v[{64+2*nb}:{65+2*nb}], v[{10+2*t}:{11+2*t}], {c}")
        s("s_nop 7")
        s("""
        v_cndmask_b32 v48, v48, v52, s[54:55]
        v_cndmask_b32 v49, v49, v53, s[54:55]
        v_cndmask_b32 v50, v50, v54, s[54:55]
        v_cndmask_b32 v51, v51, v55, s[54:55]
        v_cndmask_b32 v56, v48, v50, s[52:53]
        v_cndmask_b32 v58, v49, v51, s[52:53]
        v_mov_b32 v57, s39
        v_mov_b32 v59, s39
        global_store_dwordx4 v28, v[56:59], s[32:33] sc1
        """)
        s.stamp(9)
        done = s.new("rs2")
        s(f"""
        s_cmp_ge_u32 s46, {s.opts.get('resto2', 40)}
        s_cbranch_scc1 {done}
        s_mov_b32 exec_lo, 0x00ff00ff
        s_mov_b32 exec_hi, 0x00ff00ff
        global_store_dwordx4 v26, v[40:43], s[32:33] sc1
        global_store_dwordx4 v27, v[44:47], s[32:33] sc1
        s_mov_b64 exec, -1
        {done}:
        """)
        s.flush_stamps("v2")
        s("s_endpgm")

    def aux(s):
        s("L_aux:")
        s.stamp(1)
        s(f"""
        s_lshl_b32 s34, s4, 6
        s_lshl_b32 s35, s5, 1
        s_add_u32 s34, s34, s35
        s_lshl_b32 s35, s34, 1
        v_mov_b32 v3, s35
        s_waitcnt lgkmcnt(0)
        ds_read_b32 v4, v3 offset:{HL}
        s_waitcnt vmcnt(0) lgkmcnt(0)
        v_lshlrev_b32 v6, 16, v4
        v_and_b32 v7, 0xffff0000, v4
        v_mov_b32 v8, 0
        v_mov_b32 v9, 0
        s_mov_b32 s42, {hx(f2u(GA))}
        s_mov_b32 s43, {hx(f2u(GA))}
        s_mov_b32 s44, {hx(f2u(GB))}
        s_mov_b32 s45, {hx(f2u(GB))}
        v_mov_b32 v10, s42
        v_mov_b32 v11, s42
        """)
        for d in range(4):
            s(f"""
            v_lshlrev_b32 v12, 16, v{28+d}
            v_and_b32 v13, 0xffff0000, v{28+d}
            v_lshlrev_b32 v14, 16, v{32+d}
            v_and_b32 v15, 0xffff0000, v{32+d}
            v_lshlrev_b32 v16, 16, v{36+d}
            v_and_b32 v17, 0xffff0000, v{36+d}
            """)
            sel = [" op_sel_hi:[1,0]", " op_sel:[0,1]"]
            A, B = 40, 50
            for o, b in ((0, A), (1, B)):
                s(f"v_pk_mul_f32 v[{b}:{b+1}], v[6:7], v[12:13]{sel[o]}")
            for o, b in ((0, A), (1, B)):
                s(f"v_cvt_pk_bf16_f32 v{b+2}, v{b}, v{b+1}")
            for o, b in ((0, A), (1, B)):
                s(f"v_lshlrev_b32 v{b}, 16, v{b+2}")
                s(f"v_and_b32 v{b+1}, 0xffff0000, v{b+2}")
            for o, b in ((0, A), (1, B)):
                s(f"v_pk_add_f32 v[{b}:{b+1}], v[{b}:{b+1}], v[14:15]{sel[o]}")
            for o, b in ((0, A), (1, B)):
                s(f"v_cvt_pk_bf16_f32 v{b+2}, v{b}, v{b+1}")
            for o, b in ((0, A), (1, B)):
                s(f"v_lshlrev_b32 v{b}, 16, v{b+2}")
                s(f"v_and_b32 v{b+1}, 0xffff0000, v{b+2}")
            for o, b in ((0, A), (1, B)):
                s(f"v_pk_mul_f32 v[{b+2}:{b+3}], v[{b}:{b+1}], v[{b}:{b+1}]")
            for o, b in ((0, A), (1, B)):
                s(f"v_pk_fma_f32 v[{b+2}:{b+3}], v[{b+2}:{b+3}], s[44:45], v[10:11]")
            for o, b in ((0, A), (1, B)):
                s(f"v_pk_mul_f32 v[{b+2}:{b+3}], v[{b+2}:{b+3}], v[{b}:{b+1}]")
            for o, b in ((0, A), (1, B)):
                s(f"v_exp_f32 v{b+2}, -v{b+2}")
                s(f"v_exp_f32 v{b+3}, -v{b+3}")
            for o, b in ((0, A), (1, B)):
                s(f"v_pk_add_f32 v[{b+2}:{b+3}], v[{b+2}:{b+3}], 1.0 op_sel_hi:[1,0]")
            for o, b in ((0, A), (1, B)):
                s(f"v_rcp_f32 v{b+2}, v{b+2}")
                s(f"v_rcp_f32 v{b+3}, v{b+3}")
            for o, b in ((0, A), (1, B)):
                s(f"v_pk_mul_f32 v[{b}:{b+1}], v[{b}:{b+1}], v[{b+2}:{b+3}]")
            for o, b in ((0, A), (1, B)):
                s(f"v_cvt_pk_bf16_f32 v{b+2}, v{b}, v{b+1}")
            for o, b in ((0, A), (1, B)):
                s(f"v_lshlrev_b32 v{b}, 16, v{b+2}")
                s(f"v_and_b32 v{b+1}, 0xffff0000, v{b+2}")
            for o, b in ((0, A), (1, B)):
                s(f"v_pk_fma_f32 v[8:9], v[{b}:{b+1}], v[16:17], v[8:9]" + (" op_sel_hi:[1,0,1]" if o == 0 else " op_sel:[0,1,0]"))
        s.allreduce("v_add_f32", ["v8", "v9"], ["v12", "v13"])
        s(f"""
        s_sub_u32 s35, s3, 4
        s_lshl_b32 s35, s35, 3
        v_mov_b32 v12, s35
        v_mov_b32 v13, 1
        s_mov_b64 exec, 1
        ds_write_b64 v12, v[8:9] offset:{YL}
        ds_add_u32 v2, v13 offset:{FL+F_Y}
        s_mov_b64 exec, -1
        """)
        s.stamp(2)
        s("s_cmp_eq_u32 s3, 4")
        s("s_cbranch_scc1 L_tail")
        s.flush_stamps("v2")
        s("s_endpgm")

    def tail(s):
        s("L_tail:")
        s("s_setprio 2")
        s(f"""
        s_lshl_b32 s35, s34, 1
        v_mov_b32 v3, s35
        global_load_dword v20, v3, s[8:9]
        global_load_ushort v21, v2, s[26:27]
        s_lshl_b32 s42, s4, 17
        s_lshl_b32 s43, s5, 12
        s_add_u32 s42, s42, s43
        s_add_u32 s42, s42, {hx(OBOX)}
        v_lshl_add_u32 v4, v0, 4, s42
        global_load_dwordx4 v[24:27], v4, s[32:33] sc1
        global_load_dwordx4 v[28:31], v4, s[32:33] offset:1024 sc1
        global_load_dwordx4 v[32:35], v4, s[32:33] offset:2048 sc1
        global_load_dwordx4 v[36:39], v4, s[32:33] offset:3072 sc1
        s_lshl_b32 s43, s34, 3
        s_add_u32 s43, s43, {hx(PBOX)}
        v_lshl_add_u32 v5, v0, 12, s43
        v_add_u32 v6, 0x40000, v5
        v_add_u32 v7, 0x80000, v5
        v_add_u32 v8, 0xc0000, v5
        s_mov_b32 s44, 0x0c0c0400
        s_mov_b32 s45, 0x04000c0c
        s_mov_b32 s47, 0xffffff00
        """)
        s.wait_flag(F_Y, 4, "v2", "v9", sleep=1)
        s(f"""
        ds_read_b128 v[12:15], v2 offset:{YL}
        ds_read_b128 v[16:19], v2 offset:{YL+16}
        s_waitcnt lgkmcnt(0)
        v_add_f32 v12, v12, v14
        v_add_f32 v13, v13, v15
        v_add_f32 v16, v16, v18
        v_add_f32 v17, v17, v19
        v_add_f32 v12, v12, v16
        v_add_f32 v13, v13, v17
        v_cvt_pk_bf16_f32 v12, v12, v13
        v_and_b32 v13, 0xffff0000, v12
        v_lshlrev_b32 v12, 16, v12
        s_waitcnt vmcnt(4)
        v_lshlrev_b32 v21, 16, v21
        v_add_f32 v12, v12, v21
        v_add_f32 v13, v13, v21
        v_cvt_pk_bf16_f32 v12, v12, v13
        v_and_b32 v13, 0xffff0000, v12
        v_lshlrev_b32 v12, 16, v12
        v_mul_f32 v14, {hx(f2u(-LOG2E))}, v12
        v_mul_f32 v15, {hx(f2u(-LOG2E))}, v13
        v_exp_f32 v14, v14
        v_exp_f32 v15, v15
        s_nop 0
        v_add_f32 v14, 1.0, v14
        v_add_f32 v15, 1.0, v15
        v_rcp_f32 v14, v14
        v_rcp_f32 v15, v15
        s_nop 0
        v_mul_f32 v12, v12, v14
        v_mul_f32 v13, v13, v15
        v_cvt_pk_bf16_f32 v12, v12, v13
        v_and_b32 v13, 0xffff0000, v12
        v_lshlrev_b32 v12, 16, v12
        v_and_b32 v11, 0xffff0000, v20
        v_lshlrev_b32 v10, 16, v20
        """)
        s.stamp(3)
        s.wait_flag(F_PUB, 4, "v2", "v9")
        s.stamp(4)
        lp = s.new("opoll"); ok = s.new("ook")
        s(f"""
        s_mov_b32 s46, 0
        {lp}:
        global_load_dwordx4 v[24:27], v4, s[32:33] sc1
        global_load_dwordx4 v[28:31], v4, s[32:33] offset:1024 sc1
        global_load_dwordx4 v[32:35], v4, s[32:33] offset:2048 sc1
        global_load_dwordx4 v[36:39], v4, s[32:33] offset:3072 sc1
        s_add_u32 s46, s46, 1
        s_waitcnt vmcnt(0)
        """)
        for t in range(4):
            b = 24 + 4*t
            s(f"v_perm_b32 v{40+2*t}, v{b+1}, v{b}, s44")
            s(f"v_perm_b32 v{41+2*t}, v{b+3}, v{b+2}, s45")
        for t in range(4):
            s(f"v_or_b32 v{40+2*t}, v{40+2*t}, v{41+2*t}")
        s("""
        v_cmp_eq_u32 vcc, s41, v40
        v_cmp_eq_u32 s[48:49], s41, v42
        v_cmp_eq_u32 s[50:51], s41, v44
        v_cmp_eq_u32 s[52:53], s41, v46
        s_and_b64 vcc, vcc, s[48:49]
        s_and_b64 s[50:51], s[50:51], s[52:53]
        s_and_b64 vcc, vcc, s[50:51]
        s_cmp_eq_u64 vcc, -1
        """)
        s(f"""
        s_cbranch_scc1 {ok}
        s_cmp_lt_u32 s46, {s.maxit}
        s_cbranch_scc1 {lp}
        {ok}:
        """)
        s.stamp(5)
        for r in range(16):
            s(f"v_and_b32 v{24+r}, s47, v{24+r}")
        for t in range(4):
            s(f"v_mov_b32 v{40+t}, v{24+4*t}")
            s(f"v_mov_b32 v{44+t}, v{25+4*t}")
        s("s_nop 0")
        for t in range(4):
            s(f"v_mov_b32_dpp v{40+t}, v{24+4*t} row_shl:4 row_mask:0xf bank_mask:0x5")
            s(f"v_mov_b32_dpp v{44+t}, v{25+4*t} row_shl:4 row_mask:0xf bank_mask:0x5")
        s("""
        v_max3_f32 v48, v40, v41, v42
        v_max_f32 v48, v48, v43
        s_nop 1
        v_max_f32_dpp v48, v48, v48 row_ror:8 row_mask:0xf bank_mask:0xf
        """)
        s.xrow("v_max_f32", ["v48"], ["v49"])
        s(f"s_mov_b32 s42, {hx(f2u(LOG2E))}")
        s(f"v_mul_f32 v48, s42, v48")
        for t in range(4):
            s(f"v_fma_f32 v{40+t}, v{40+t}, s42, -v48")
        for t in range(4):
            s(f"v_exp_f32 v{40+t}, v{40+t}")
        s("s_nop 0")
        s("v_mul_f32 v50, v40, v44")
        for r in range(4):
            s(f"v_mul_f32 v{52+r}, v40, v{24+r}")
        for t in range(1, 4):
            s(f"v_fmac_f32 v50, v{40+t}, v{44+t}")
            for r in range(4):
                s(f"v_fmac_f32 v{52+r}, v{40+t}, v{24+4*t+r}")
        regs = ["v50", "v52", "v53", "v54", "v55"]
        s("s_nop 0")
        for r in regs:
            s(f"v_add_f32_dpp {r}, {r}, {r} row_ror:8 row_mask:0xf bank_mask:0xf")
        s.xrow("v_add_f32", regs, ["v56", "v57", "v58", "v59", "v60"])
        s("""
        v_rcp_f32 v50, v50
        s_nop 0
        v_mul_f32 v52, v52, v50
        v_mul_f32 v53, v53, v50
        v_mul_f32 v54, v54, v50
        v_mul_f32 v55, v55, v50
        v_cvt_pk_bf16_f32 v52, v52, v53
        v_cvt_pk_bf16_f32 v53, v54, v55
        v_lshlrev_b32 v56, 3, v0
        v_mov_b32 v57, 1
        s_mov_b64 exec, 15
        """)
        s(f"ds_write_b64 v56, v[52:53] offset:{OL}")
        s("s_mov_b64 exec, 1")
        s(f"ds_add_u32 v2, v57 offset:{FL+F_O}")
        s("s_mov_b64 exec, -1")
        s.stamp(6)
        lp = s.new("ppoll"); ok = s.new("pok")
        s(f"""
        s_mov_b32 s46, 0
        {lp}:
        global_load_dwordx4 v[24:27], v5, s[32:33] sc1
        global_load_dwordx4 v[28:31], v6, s[32:33] sc1
        global_load_dwordx4 v[32:35], v7, s[32:33] sc1
        global_load_dwordx4 v[36:39], v8, s[32:33] sc1
        s_add_u32 s46, s46, 1
        s_waitcnt vmcnt(0)
        v_cmp_eq_u32 vcc, s39, v25
        v_cmp_eq_u32 s[48:49], s39, v27
        v_cmp_eq_u32 s[50:51], s39, v29
        v_cmp_eq_u32 s[52:53], s39, v31
        v_cmp_eq_u32 s[54:55], s39, v33
        v_cmp_eq_u32 s[56:57], s39, v35
        v_cmp_eq_u32 s[60:61], s39, v37
        v_cmp_eq_u32 s[62:63], s39, v39
        s_and_b64 vcc, vcc, s[48:49]
        s_and_b64 s[50:51], s[50:51], s[52:53]
        s_and_b64 s[54:55], s[54:55], s[56:57]
        s_and_b64 s[60:61], s[60:61], s[62:63]
        s_and_b64 vcc, vcc, s[50:51]
        s_and_b64 s[54:55], s[54:55], s[60:61]
        s_and_b64 vcc, vcc, s[54:55]
        s_cmp_eq_u64 vcc, -1
        s_cbranch_scc1 {ok}
        s_cmp_lt_u32 s46, {s.maxit}
        s_cbranch_scc1 {lp}
        {ok}:
        """)
        s.stamp(7)
        s("""
        v_add_f32 v24, v24, v28
        v_add_f32 v26, v26, v30
        v_add_f32 v32, v32, v36
        v_add_f32 v34, v34, v38
        v_add_f32 v24, v24, v32
        v_add_f32 v26, v26, v34
        """)
        s.allreduce("v_add_f32", ["v24", "v26"], ["v25", "v27"])
        s(f"""
        v_cvt_pk_bf16_f32 v24, v24, v26
        v_and_b32 v25, 0xffff0000, v24
        v_lshlrev_b32 v24, 16, v24
        v_mul_f32 v24, v24, v12
        v_mul_f32 v25, v25, v13
        v_cvt_pk_bf16_f32 v24, v24, v25
        v_and_b32 v25, 0xffff0000, v24
        v_lshlrev_b32 v24, 16, v24
        v_add_f32 v24, v24, v10
        v_add_f32 v25, v25, v11
        v_cvt_pk_bf16_f32 v24, v24, v25
        s_mov_b64 exec, 1
        global_store_dword v3, v24, s[28:29]
        s_cmp_lg_u32 s2, 0
        s_cbranch_scc1 L_tail_end
        v_mov_b32 v25, s38
        global_store_dword v2, v25, s[32:33]
        L_tail_end:
        s_mov_b64 exec, -1
        """)
        s.stamp(8)
        s.flush_stamps("v2")
        s("s_endpgm")

def add_pads(text):
    def assemble(t):
        open("_g.s", "w").write(t)
        r = subprocess.run(["clang", "-x", "assembler", "-target", "amdgcn-amd-amdhsa", "-mcpu=gfx950", "-c", "_g.s", "-o", "_g.o"], capture_output=True, text=True)
        if r.returncode: print(r.stderr); raise SystemExit(1)
        d = subprocess.run(["llvm-objdump", "-d", "--mcpu=gfx950", "_g.o"], capture_output=True, text=True).stdout
        addrs = [int(m.group(1), 16) for m in re.finditer(r"// ([0-9A-F]{12}):", d)]
        return addrs
    lines = text.split("\n")
    def is_inst(l):
        t = l.strip()
        return l.startswith("    ") and t and not t.startswith(".") and not t.startswith(";")
    npads = 8
    placed = {}
    for k in range(1, npads + 1):
        def render():
            out = []
            for i, l in enumerate(lines):
                for kk, pos in placed.items():
                    if pos == i:
                        out.append(f"L_pad{kk}:"); out.append("    s_cbranch_execz L_touch_ret")
                if l == "L_exit:":
                    for kk in range(1, npads + 1):
                        if kk not in placed:
                            out.append(f"L_pad{kk}:"); out.append("    s_cbranch_execz L_touch_ret")
                out.append(l)
            return "\n".join(out)
        t = render()
        addrs = assemble(t)
        rl = t.split("\n")
        inst_lines = [i for i, l in enumerate(rl) if is_inst(l)]
        assert len(inst_lines) == len(addrs), (len(inst_lines), len(addrs))
        tgt = None
        for idx, a in zip(inst_lines, addrs):
            if a >= 1024 * k:
                tgt = idx; break
        cnt = -1; orig = None
        out_i = 0
        for i, l in enumerate(lines):
            extra = sum(2 for kk, pos in placed.items() if pos == i)
            if l == "L_exit:": extra += 2 * sum(1 for kk in range(1, npads + 1) if kk not in placed)
            out_i += extra
            if out_i == tgt: orig = i; break
            out_i += 1
        if orig is None or lines[orig].strip() == "s_endpgm" and lines[orig-1] == "L_exit:":
            break
        placed[k] = orig
    out = []
    for i, l in enumerate(lines):
        for kk, pos in placed.items():
            if pos == i:
                out.append(f"L_pad{kk}:"); out.append("    s_cbranch_execz L_touch_ret")
        if l == "L_exit:":
            for kk in range(1, npads + 1):
                if kk not in placed:
                    out.append(f"L_pad{kk}:"); out.append("    s_cbranch_execz L_touch_ret")
        out.append(l)
    t = "\n".join(out)
    addrs = assemble(t)
    return t, addrs[-1]

if __name__ == "__main__":
    import argparse
    ap = argparse.ArgumentParser()
    ap.add_argument("-o", default="out.s"); ap.add_argument("--stamps", action="store_true"); ap.add_argument("-W", type=int, default=24)
    a = ap.parse_args()
    g = Gen(W=a.W, stamps=a.stamps)
    t = g.build()
    t, size = add_pads(t)
    open(a.o, "w").write(t)
    print("code bytes ~", size)
```
